```python
import torch

def _softmax(x, axis=-1):
    return torch.softmax(x, dim=axis)
def _gelu(x):
    return torch.nn.functional.gelu(x, approximate="tanh")
def _silu(x):
    return torch.nn.functional.silu(x)
def _sigmoid(x):
    return torch.sigmoid(x)
def _layernorm(x, axis=-1, eps=1e-5):
    m = x.mean(dim=axis, keepdim=True)
    v = x.var(dim=axis, keepdim=True, unbiased=False)
    return (x - m) / torch.sqrt(v + eps)
def _scatter_add(tgt, idx, src, axis=0):
    return tgt.clone().index_add_(axis, idx, src)
def _segment_sum(src, seg, n):
    out = torch.zeros((n,) + src.shape[1:], dtype=src.dtype)
    return out.index_add_(0, seg, src)
def _pad(x, pw):
    flat = tuple(v for pair in reversed(pw) for v in pair)
    return torch.nn.functional.pad(x, flat)

kernel_name = 'interleave_layers__sliding_block__linear_kernel_hedgehog__prompt'

def setup_inputs():

    _w = (lambda a: (lambda t: t.to(torch.bfloat16) if t.is_floating_point() else t)(torch.as_tensor(a)))
    def _A_setup():
        B, S, D = 1, 2048, 512
        return {
            "x": _w((lambda *s: torch.randn(*s, dtype=torch.bfloat16) * 0.05)(B, S, D)),
            "wqkv": _w((lambda *s: torch.randn(*s, dtype=torch.bfloat16) * 0.05)(D, 3 * D)),
            "wo": _w((lambda *s: torch.randn(*s, dtype=torch.bfloat16) * 0.05)(D, D)),
        }
    _A_in = _A_setup()

    def _B_setup():
        B, S, D, H = 1, 2048, 512, 32
        Dh = D // H
        return {
            "x": _w((lambda *s: torch.randn(*s, dtype=torch.bfloat16) * 0.05)(B, S, D)),
            "wqkv": _w((lambda *s: torch.randn(*s, dtype=torch.bfloat16) * 0.4)(D, 3 * D)),
            "w_phi": _w((lambda *s: torch.randn(*s, dtype=torch.bfloat16) * 0.4)(H, Dh, Dh) * (Dh ** -0.5)),
            "wo": _w((lambda *s: torch.randn(*s, dtype=torch.bfloat16) * 0.05)(D, D)),
        }
    _B_in = _B_setup()

    return {
        "A_x": _A_in["x"],
        "A_wqkv": _A_in["wqkv"],
        "A_wo": _A_in["wo"],
        "B_x": _B_in["x"],
        "B_wqkv": _B_in["wqkv"],
        "B_w_phi": _B_in["w_phi"],
        "B_wo": _B_in["wo"],
    }

def reference(A_x, A_wqkv, A_wo, B_x, B_wqkv, B_w_phi, B_wo):
    def _A_ref(x, wqkv, wo):
        B, S, D = x.shape
        H = 32; Dh = D // H; W = 256
        qkv = (lambda x, *d: x.permute(*d))((x @ wqkv).reshape(B, S, 3, H, Dh), 2, 0, 3, 1, 4)
        q, k, v = qkv[0], qkv[1], qkv[2]
        scores = torch.einsum("bhqd,bhkd->bhqk", q, k) * (Dh ** -0.5)
        idx = torch.arange(S)
        mask = (idx[:, None] - idx[None, :] >= 0) & (idx[:, None] - idx[None, :] < W)
        scores = torch.where(mask[None, None], scores, -1e9)
        p = _softmax(scores, axis=-1)
        o = torch.einsum("bhqk,bhkd->bhqd", p, v)
        return (lambda x, *d: x.permute(*d))(o, 0, 2, 1, 3).reshape(B, S, D) @ wo

    def _B_ref(x, wqkv, w_phi, wo):
        B, S, D = x.shape
        H = 32; Dh = D // H
        qkv = (lambda x, *d: x.permute(*d))((x @ wqkv).reshape(B, S, 3, H, Dh), 2, 0, 3, 1, 4)
        q, k, v = qkv[0], qkv[1], qkv[2]
        pq = torch.einsum("bhsd,hdf->bhsf", q, w_phi)
        pk = torch.einsum("bhsd,hdf->bhsf", k, w_phi)
        phi_q = torch.concatenate([_softmax(pq, axis=-1), _softmax(-pq, axis=-1)], axis=-1)
        phi_k = torch.concatenate([_softmax(pk, axis=-1), _softmax(-pk, axis=-1)], axis=-1)
        kv = torch.einsum("bhsf,bhsd->bhfd", phi_k, v)
        z  = torch.einsum("bhsf->bhf", phi_k)
        num = torch.einsum("bhqf,bhfd->bhqd", phi_q, kv)
        den = torch.einsum("bhqf,bhf->bhq", phi_q, z)[..., None] + 1e-6
        o = num / den
        return (lambda x, *d: x.permute(*d))(o, 0, 2, 1, 3).reshape(B, S, D) @ wo

    x = A_x
    x = x + _A_ref(_layernorm(x, axis=-1), A_wqkv, A_wo)
    x = x + _B_ref(_layernorm(x, axis=-1), B_wqkv, B_w_phi, B_wo)
    x = x + _A_ref(_layernorm(x, axis=-1), A_wqkv, A_wo)
    x = x + _B_ref(_layernorm(x, axis=-1), B_wqkv, B_w_phi, B_wo)
    return x
```

```python
import re

MODS = re.compile(r'\b(op_sel|op_sel_hi|neg_lo|neg_hi):\[[^\]]*\]|\boffset\d?:\S+|\b(offen|idxen|sc0|sc1|nt|lds|glc)\b|\bbitop3:\S+|\b(row_shr|row_ror|row_shl|row_bcast|quad_perm|row_mask|bank_mask|bound_ctrl|row_newbcast):\S+|\brow_mirror\b|\brow_half_mirror\b|\bclamp\b')
REG = re.compile(r'^-?\|?(abs\()?([vas])(\d+)\)?\|?$|^-?([vas])\[(\d+):(\d+)\]$')
TRANS = ('v_exp_f32', 'v_log_f32', 'v_rcp_f32', 'v_rsq_f32', 'v_sqrt_f32', 'v_sin_f32', 'v_cos_f32',
         'v_rcp_iflag_f32', 'v_exp_f16')


def regs_of(tok):
    tok = tok.strip()
    if tok == 'vcc':
        return [('s', 'vcc')]
    if tok == 'exec':
        return [('s', 'exec')]
    if tok == 'm0':
        return [('s', 'm0')]
    m = REG.match(tok)
    if not m:
        return []
    if m.group(2):
        return [(m.group(2), int(m.group(3)))]
    return [(m.group(4), i) for i in range(int(m.group(5)), int(m.group(6)) + 1)]


class Ins:
    def __init__(self, text):
        self.text = text
        t = text.split(';')[0].strip()
        sp = t.split(None, 1)
        self.op = op = sp[0]
        rest = sp[1] if len(sp) > 1 else ''
        self.is_lds_dma = bool(re.search(r'\blds\b', rest)) and op.startswith(('buffer_load', 'global_load'))
        self.dpp = bool(re.search(r'row_shr|row_ror|row_shl|row_bcast|quad_perm|row_mirror|row_half_mirror|row_newbcast', rest))
        rest = MODS.sub('', rest)
        ops = [x.strip() for x in rest.split(',')] if rest.strip() else []
        R = [regs_of(x) for x in ops]
        self.rd, self.wr = [], []
        self.srcC = []
        self.srcAB = []
        self.passes = 0
        self.wide_data = []
        flat = lambda L: [r for x in L for r in x]
        if op.startswith('v_mfma'):
            self.kind = 'mfma'
            self.wr = R[0]
            self.srcAB = R[1] + R[2]
            self.srcC = R[3]
            self.rd = self.srcAB + self.srcC
            self.passes = 8 if '32x32x16' in op else 4
        elif op.startswith('v_'):
            self.kind = 'trans' if op.replace('_e32', '').replace('_e64', '') in TRANS else 'valu'
            if op.startswith('v_cmp'):
                self.wr = R[0]
                self.rd = flat(R[1:])
            elif op.startswith(('v_permlane32_swap', 'v_permlane16_swap', 'v_swap')):
                self.wr = R[0] + R[1]
                self.rd = R[0] + R[1]
            elif op.startswith(('v_add_co', 'v_sub_co', 'v_addc_co', 'v_subb_co')):
                self.wr = R[0] + R[1]
                self.rd = flat(R[2:])
            else:
                self.wr = R[0]
                self.rd = flat(R[1:])
                if op.startswith(('v_fmac', 'v_pk_fmac', 'v_dot2c', 'v_writelane')) or self.dpp:
                    self.rd += R[0]
                if op.startswith('v_cndmask') and len(ops) == 3:
                    self.rd.append(('s', 'vcc'))
        elif op.startswith('ds_read') or op.startswith('ds_bpermute') or op.startswith('ds_swizzle'):
            self.kind = 'ds_rd'
            self.wr = R[0]
            self.rd = flat(R[1:])
        elif op.startswith('ds_'):
            self.kind = 'ds_wr'
            self.rd = flat(R)
        elif op.startswith(('buffer_load', 'global_load')):
            if self.is_lds_dma:
                self.kind = 'vm_lds'
                self.rd = flat(R) + [('s', 'm0')]
            else:
                self.kind = 'vm_ld'
                self.wr = R[0]
                self.rd = flat(R[1:])
                if 'd16' in op:
                    self.rd += R[0]
        elif op.startswith(('buffer_store', 'global_store', 'buffer_atomic', 'global_atomic')):
            self.kind = 'vm_st'
            self.rd = flat(R)
            if 'x4' in op or 'x3' in op:
                self.wide_data = R[0] if op.startswith('buffer') else R[1]
        elif op.startswith(('s_load', 's_memtime', 's_memrealtime', 's_buffer_load')):
            self.kind = 'smem'
            self.wr = R[0]
            self.rd = flat(R[1:])
        elif op in ('s_waitcnt',):
            self.kind = 'wait'
        elif op == 's_nop':
            self.kind = 'nop'
        elif op.startswith(('s_cbranch', 's_branch', 's_endpgm', 's_setpc', 's_swappc')):
            self.kind = 'br'
            if 'vcc' in op:
                self.rd = [('s', 'vcc')]
        elif op in ('s_barrier', 's_sleep', 's_setprio', 'buffer_wbl2', 'buffer_inv'):
            self.kind = 'other'
        elif op.startswith(('s_cmp', 's_bitcmp')):
            self.kind = 'salu'
            self.rd = flat(R)
        elif op.startswith('s_'):
            self.kind = 'salu'
            self.wr = R[0]
            self.rd = flat(R[1:])
            if 'saveexec' in op:
                self.wr = self.wr + [('s', 'exec')]
        else:
            raise ValueError('unknown op ' + text)
        self.dotAB = set(R[1] + R[2]) if op.startswith('v_dot') else set()
        self.rd = set(self.rd)
        self.wr = set(self.wr)
        self.srcC = set(self.srcC)
        self.srcAB = set(self.srcAB)
        self.wide_data = set(self.wide_data)

    def is_valu(self):
        return self.kind in ('valu', 'trans')


def need_states(p, c):
    n = 0
    cv = c.is_valu()
    cmem = c.kind in ('ds_rd', 'ds_wr', 'vm_ld', 'vm_st', 'vm_lds')
    if p.kind == 'mfma':
        D = p.wr
        big = {8: 12, 4: 8}[p.passes]
        ovl = {8: 10, 4: 6}[p.passes]
        if c.kind == 'mfma':
            if D & c.srcAB:
                n = max(n, big)
            if D & c.srcC:
                if not (D == c.srcC and p.passes == c.passes):
                    n = max(n, ovl)
            elif D & c.wr:
                n = max(n, ovl)
        elif cv or cmem:
            if D & (c.rd | c.wr):
                n = max(n, big)
        if (cv or cmem) and (p.srcC & c.wr):
            n = max(n, {8: 7, 4: 3}[p.passes])
    if p.is_valu():
        vw = {r for r in p.wr if r[0] in 'va'}
        sw = {r for r in p.wr if r[0] == 's'}
        if c.kind == 'mfma' and (vw & c.rd):
            n = max(n, 2)
        if cv and (c.op.startswith('v_permlane') or c.dpp) and (vw & c.rd):
            n = max(n, 2)
        if cv and c.op.startswith(('v_readfirstlane', 'v_readlane')) and (vw & c.rd):
            n = max(n, 1)
        if p.kind == 'trans' and c.kind == 'valu' and (vw & c.rd):
            n = max(n, 1)
        if sw & c.rd:
            if cv:
                n = max(n, 4 if c.op.startswith(('v_readlane', 'v_writelane')) else 2)
            elif c.kind in ('vm_ld', 'vm_st', 'vm_lds'):
                n = max(n, 5)
            elif c.kind in ('salu', 'br', 'smem'):
                n = max(n, 1)
    if p.op.startswith('v_dot') and (cv or c.kind == 'mfma' or cmem) and (p.wr & (c.rd | c.wr)):
        if not (c.op == p.op and not (p.wr & c.dotAB)):
            n = max(n, 3)
    if p.wide_data and (p.wide_data & c.wr):
        n = max(n, 2)
    if p.kind == 'salu' and ('s', 'm0') in p.wr and c.kind == 'vm_lds':
        n = max(n, 1)
    return n


class Asm:
    def __init__(self):
        self.out = []
        self.hist = []
        self.pos = 0
        self.vm = []
        self.lg = []
        self.smem = set()
        self.nops = 0
        self.ninstr = 0
        self.snaps = {}

    def raw(self, text):
        self.out.append(text)

    def comment(self, text):
        self.out.append('    ; ' + text)

    def _put(self, ins, states=1):
        self.out.append('    ' + ins.text)
        self.hist.append((self.pos, ins))
        self.pos += states
        self.ninstr += 1
        self.hist = [h for h in self.hist if self.pos - h[0] < 24]

    def nop(self, n):
        while n > 0:
            k = min(n, 16)
            self._put(Ins(f's_nop {k-1}'), k)
            self.nops += k
            n -= k

    def wait(self, vm=None, lg=None):
        parts = []
        if vm is not None:
            vm = min(vm, 63)
            parts.append(f'vmcnt({vm})')
            self.vm = self.vm[len(self.vm) - vm:] if vm < len(self.vm) else self.vm
            if vm == 0:
                self.vm = []
        if lg is not None:
            lg = min(lg, 15)
            parts.append(f'lgkmcnt({lg})')
            self.lg = self.lg[len(self.lg) - lg:] if lg < len(self.lg) else self.lg
            if lg == 0:
                self.lg = []
                self.smem = set()
        self._put(Ins('s_waitcnt ' + ' '.join(parts)))

    def __call__(self, text):
        for line in text.strip().split('\n'):
            line = line.strip()
            if not line or line.startswith(';'):
                continue
            self.emit(line)

    def emit(self, text):
        ins = Ins(text)
        if ins.kind == 'wait':
            m1 = re.search(r'vmcnt\((\d+)\)', text)
            m2 = re.search(r'lgkmcnt\((\d+)\)', text)
            self.wait(int(m1.group(1)) if m1 else None, int(m2.group(1)) if m2 else None)
            return
        if ins.kind == 'nop':
            self.nop(int(text.split()[1]) + 1)
            return
        touched = ins.rd | ins.wr
        vmn = lgn = None
        for i in range(len(self.vm) - 1, -1, -1):
            if self.vm[i] & touched:
                vmn = len(self.vm) - 1 - i
                break
        for i in range(len(self.lg) - 1, -1, -1):
            if self.lg[i] & touched:
                lgn = len(self.lg) - 1 - i
                break
        if self.smem & touched:
            lgn = 0
        if lgn is not None and self.smem:
            lgn = 0
        if vmn is not None or lgn is not None:
            self.wait(vmn, lgn)
        deficit = 0
        for pos, p in self.hist:
            n = need_states(p, ins)
            if n:
                have = self.pos - pos - 1
                deficit = max(deficit, n - have)
        if deficit > 0:
            self.nop(deficit)
        self._put(ins)
        if ins.kind in ('vm_ld', 'vm_st', 'vm_lds'):
            self.vm.append(set(ins.wr))
        elif ins.kind in ('ds_rd', 'ds_wr'):
            self.lg.append(set(ins.wr))
        elif ins.kind == 'smem':
            self.smem |= ins.wr

    def flush(self):
        deficit = 0
        for pos, p in self.hist:
            n = 0
            if p.kind == 'mfma':
                n = {8: 12, 4: 8}[p.passes]
            elif p.is_valu():
                n = 5 if any(r[0] == 's' for r in p.wr) else 2
            if p.wide_data:
                n = max(n, 2)
            if p.kind == 'salu' and ('s', 'm0') in p.wr:
                n = max(n, 1)
            have = self.pos - pos - 1
            deficit = max(deficit, n - have)
        if deficit > 0:
            self.nop(deficit)

    def label(self, name, flush=True):
        if flush:
            self.flush()
        for snap in self.snaps.pop(name, []):
            self.hist = [(self.pos - age, ins) for age, ins in snap] + self.hist
        self.hist.sort(key=lambda x: x[0])
        self.out.append(name + ':')

    def branch(self, text, flush=True):
        if flush:
            self.pos += 1
            self.flush()
            self.pos -= 1
        self.emit(text)
        if not flush:
            self.snaps.setdefault(text.split()[-1], []).append([(self.pos - p, i) for p, i in self.hist])

    def state(self):
        return ([set(x) for x in self.vm], [set(x) for x in self.lg], set(self.smem))

    def set_state(self, st):
        self.vm = [set(x) for x in st[0]]
        self.lg = [set(x) for x in st[1]]
        self.smem = set(st[2])

    def assume_drained(self):
        self.vm, self.lg, self.smem = [], [], set()

    def text(self):
        return '\n'.join(self.out) + '\n'


def vr(base, n=1, kind='v'):
    return f'{kind}{base}' if n == 1 else f'{kind}[{base}:{base+n-1}]'
```

```python
import sys, struct
sys.path.insert(0, 'work')
from asmlib import Asm, vr

NAME = 'interleave_layers__sliding_block__linear_kernel_hedgehog__prompt'
DIAG = '--diag' in sys.argv
OUT = [a for a in sys.argv[1:] if not a.startswith('--')]
OUT = OUT[0] if OUT else f'cdna_kernels/{NAME}.s'


def fbits(x):
    return '0x%08x' % struct.unpack('<I', struct.pack('<f', x))[0]


TILE_STRIDE = 0x40000
OFF_X = 0
OFF_O = 0x18000
OFF_STAT = 0x38000
OFF_XFLAG = 0x3C000
OFF_OFLAG = 0x3E000
KVH = 0x1000000
KVHF = 0x1800000
KVPF = 0x1840000
ZP = 0x1880000
EPOCH = 0x18C0000
KVP = 0x1900000
STAMP = 0x2000000
L_WQ, L_WK, L_WV = 0, 0x8000, 0x10000
L_KV = 0x10000
L_OWN = 0x18000
L_QX = 0x1C000
L_ZPART = 0x1C000
L_KVTOT = 0x1D000
L_ZTOT = 0x1D800
L_CS = 0x1E000
L_ST = 0x1E400
L_WO = 0x20000
LDS_BYTES = 0x28000
S_X, S_WQ, S_WO, S_WS, S_OUT, S_PHI = 's[4:7]', 's[8:11]', 's[12:15]', 's[16:19]', 's[20:23]', 's[24:27]'
sRb, sG, sM, sTile, sTag, sLayer, sMode, sXcc, sTB = 's28', 's29', 's30', 's31', 's32', 's33', 's34', 's35', 's36'
sScale, sHalf = 's37', 's38'
sVM = 's[58:59]'
sL2E = 's[56:57]'
sO1, sO2, sF1, sF2 = 's64', 's65', 's66', 's67'
sD3L, sD3T = 's68', 's69'
sStampOff = 's70'
vLane, vL16, vW1, vW2, vW1h, vW2h, vWo, vDq, vDo = 0, 1, 2, 3, 4, 5, 6, 7, 8
vStatLd, vStatSt, vCsRd, vCsV, vStW, vStR, vT0 = 9, 10, 11, 12, 13, 14, 15
RES, ACCK, ACCV, ACCQ, WF, BLO = 16, 32, 48, 64, 80, 104
W0 = 120
aX = 0
aPHI = 128
aID = 136

a = Asm()
uid = [0]


def L(name):
    uid[0] += 1
    return f'L_{name}_{uid[0]}'


nstamp = [0]
stamp_names = []


def stamp(name):
    if not DIAG:
        return
    idx = len(stamp_names)
    stamp_names.append(name)
    a('s_waitcnt lgkmcnt(0)')
    a('s_memrealtime s[72:73]')
    a('s_lshl_b32 s74, s33, 7')
    a(f's_add_u32 s74, s74, {idx*4}')
    a(f's_add_u32 s74, s74, {sStampOff}')
    a('s_waitcnt lgkmcnt(0)')
    a('v_mov_b32 v254, s72')
    a('v_mov_b32 v255, 0')
    a('s_mov_b64 s[72:73], exec')
    a('s_mov_b64 exec, 1')
    st = a.state()
    a(f'buffer_store_dword v254, v255, {S_WS}, s74 offen')
    a('s_mov_b64 exec, s[72:73]')


def dma(srd, vpat, lds_base, col_off, row_stride, s_lds=None, s_col=None):
    a(f's_lshl_b32 s60, {sM}, 13')
    if s_lds:
        a(f's_add_u32 m0, s60, {s_lds}')
    else:
        a(f's_add_u32 m0, s60, {lds_base}')
    a(f's_mul_i32 s61, {sM}, {128*row_stride}')
    if s_col:
        a(f's_add_u32 s61, s61, {s_col}')
    elif col_off:
        a(f's_add_u32 s61, s61, {col_off}')
    for i in range(8):
        a(f'buffer_load_dwordx4 v{vpat}, {srd}, s61 offen lds')
        if i < 7:
            a('s_add_u32 m0, m0, 1024')
            a(f's_add_u32 s61, s61, {16*row_stride}')


def trread(dst, va, vb, off, offb=None):
    a(f'ds_read_b64_tr_b16 {vr(dst,2)}, v{va} offset:{off}')
    a(f'ds_read_b64_tr_b16 {vr(dst+2,2)}, v{vb} offset:{off if offb is None else offb}')


def mfma(d, A, B, C):
    a(f'v_mfma_f32_32x32x16_bf16 {d}, {A}, {B}, {C}')


def poll(vaddr, soff, vtmp, masked=False, nlanes_note=''):
    lab = L('poll')
    a('s_mov_b32 s39, 0')
    a.label(lab)
    a(f'buffer_load_dword v{vtmp}, v{vaddr}, {S_WS}, {soff} offen sc1')
    a('s_add_u32 s39, s39, 1')
    a('s_cmp_ge_u32 s39, 0x100000')
    a('s_cbranch_scc1 L_end')
    a('s_waitcnt vmcnt(0)')
    if masked:
        a(f'v_and_b32 v{vtmp+1}, -16, v{vtmp}')
        a(f'v_cmp_ne_u32 vcc, {sTag}, v{vtmp+1}')
    else:
        a(f'v_cmp_ne_u32 vcc, {sTag}, v{vtmp}')
    a.branch(f's_cbranch_vccnz {lab}', flush=False)


def allreduce_pair(x, y, op, t):
    a(f'v_permlane32_swap_b32 v{x}, v{y}')
    a(f'{op} v{x}, v{x}, v{y}')
    a(f'v_mov_b32 v{y}, v{x}')
    a(f'v_permlane32_swap_b32 v{x}, v{y}')


def stats_partial(t):
    a(f'v_pk_add_f32 {vr(t,2)}, {vr(RES,2)}, {vr(RES+2,2)}')
    a(f'v_pk_mul_f32 {vr(t+2,2)}, {vr(RES,2)}, {vr(RES,2)}')
    for i in range(1, 8):
        if i >= 2:
            a(f'v_pk_add_f32 {vr(t,2)}, {vr(t,2)}, {vr(RES+2*i,2)}')
        a(f'v_pk_fma_f32 {vr(t+2,2)}, {vr(RES+2*i,2)}, {vr(RES+2*i,2)}, {vr(t+2,2)}')
    a(f'v_add_f32 v{t}, v{t}, v{t+1}')
    a(f'v_add_f32 v{t+2}, v{t+2}, v{t+3}')
    a(f'v_permlane32_swap_b32 v{t}, v{t+2}')
    a(f'v_add_f32 v{t}, v{t}, v{t+2}')


def colsum():
    skip = L('cs_skip')
    a(f's_cmp_ge_u32 {sM}, 3')
    a.branch(f's_cbranch_scc1 {skip}')
    t1, t2, ones = W0, W0 + 1, W0 + 4
    a(f's_lshl_b32 s60, {sM}, 15')
    a(f'v_add_u32 v{t1}, s60, v{vW1}')
    a(f'v_add_u32 v{t2}, s60, v{vW2}')
    for i in range(4):
        a(f'v_mov_b32 v{ones+i}, 0x3f803f80')
    NB = 6
    for ks in range(min(NB - 1, 32)):
        trread(WF + 4 * (ks % NB), t1, t2, ks * 1024)
    for ks in range(32):
        if ks + NB - 1 < 32:
            k2 = ks + NB - 1
            trread(WF + 4 * (k2 % NB), t1, t2, k2 * 1024)
        mfma(vr(ACCQ, 16), vr(ones, 4), vr(WF + 4 * (ks % NB), 4), vr(ACCQ, 16) if ks else '0')
    a(f's_lshl_b32 s60, {sM}, 7')
    a(f'v_add_u32 v{t1}, s60, v{vCsV}')
    a(f'ds_write_b32 v{t1}, v{ACCQ}')
    a('s_waitcnt lgkmcnt(0)')
    a.label(skip)


def phi(src, ah, dst, P, t):
    mfma(vr(P, 16), vr(aPHI + 4 * ah, 4, 'a'), vr(src, 4), '0')
    for half, tt in ((0, t), (8, t + 1)):
        a(f'v_max3_f32 v{tt}, v{P+half}, v{P+half+1}, v{P+half+2}')
        a(f'v_max3_f32 v{tt}, v{tt}, v{P+half+3}, v{P+half+4}')
        a(f'v_max3_f32 v{tt}, v{tt}, v{P+half+5}, v{P+half+6}')
        a(f'v_max_f32 v{tt}, v{tt}, v{P+half+7}')
    allreduce_pair(t, t + 1, 'v_max_f32', None)
    a(f'v_pk_mul_f32 {vr(t,2)}, {vr(t,2)}, {sL2E} neg_lo:[0,1] neg_hi:[0,1]')
    for i in range(8):
        sel = 0 if i < 4 else 1
        a(f'v_pk_fma_f32 {vr(P+2*i,2)}, {vr(P+2*i,2)}, {sL2E}, {vr(t,2)} op_sel:[0,0,{sel}] op_sel_hi:[1,1,{sel}]')
    for i in range(16):
        a(f'v_exp_f32 v{P+i}, v{P+i}')
    for half, tt in ((0, t), (8, t + 2)):
        a(f'v_pk_add_f32 {vr(tt,2)}, {vr(P+half,2)}, {vr(P+half+2,2)}')
        a(f'v_pk_add_f32 {vr(tt,2)}, {vr(tt,2)}, {vr(P+half+4,2)}')
        a(f'v_pk_add_f32 {vr(tt,2)}, {vr(tt,2)}, {vr(P+half+6,2)}')
    a(f'v_add_f32 v{t}, v{t}, v{t+1}')
    a(f'v_add_f32 v{t+1}, v{t+2}, v{t+3}')
    allreduce_pair(t, t + 1, 'v_add_f32', None)
    a(f'v_rcp_f32 v{t}, v{t}')
    a(f'v_rcp_f32 v{t+1}, v{t+1}')
    for i in range(8):
        sel = 0 if i < 4 else 1
        a(f'v_pk_mul_f32 {vr(P+2*i,2)}, {vr(P+2*i,2)}, {vr(t,2)} op_sel:[0,{sel}] op_sel_hi:[1,{sel}]')
    for i in range(8):
        a(f'v_cvt_pk_bf16_f32 v{dst+i}, v{P+2*i}, v{P+2*i+1}')


a.raw(f'''; generated by gen1.py
; @launch grid=(256,1,1) block=(256,1,1) lds={LDS_BYTES}
.amdgcn_target "amdgcn-amd-amdhsa--gfx950"
.text
.globl {NAME}_kernel
.p2align 8
.type {NAME}_kernel,@function
{NAME}_kernel:''')
a('s_cmp_ge_u32 s2, 256')
a.branch('s_cbranch_scc1 L_end')
a('''
s_load_dwordx4 s[40:43], s[0:1], 0
s_load_dwordx2 s[44:45], s[0:1], 16
s_load_dwordx2 s[46:47], s[0:1], 72
s_load_dwordx4 s[48:51], s[0:1], 32
s_load_dwordx4 s[52:55], s[0:1], 48
''')
a(f'''
v_lshrrev_b32 v1, 6, v0
v_and_b32 v0, 63, v0
v_readfirstlane_b32 {sM}, v1
s_and_b32 {sRb}, s2, 7
s_lshl_b32 {sRb}, {sRb}, 1
s_bfe_u32 s3, s2, 0x10003
s_add_u32 {sRb}, {sRb}, s3
s_lshr_b32 {sG}, s2, 4
s_lshl_b32 {sTile}, {sRb}, 2
s_add_u32 {sTile}, {sTile}, {sM}
s_lshl_b32 {sTB}, {sTile}, 18
s_getreg_b32 {sXcc}, hwreg(HW_REG_XCC_ID, 0, 4)
s_mov_b32 {sLayer}, 0
s_mov_b32 {sMode}, 0
s_mov_b32 s58, 0x0000ffff
s_mov_b32 s59, 0x0000ffff
s_mov_b32 s56, {fbits(1.4426950408889634)}
s_mov_b32 s57, {fbits(1.4426950408889634)}
v_lshlrev_b32 v{vL16}, 4, v{vLane}
''')
if DIAG:
    a(f's_lshl_b32 {sStampOff}, s2, 2')
    a(f's_add_u32 {sStampOff}, {sStampOff}, {sM}')
    a(f's_lshl_b32 {sStampOff}, {sStampOff}, 9')
    a(f's_add_u32 {sStampOff}, {sStampOff}, {STAMP}')
T, HF, L15, RR, CC, NH = 120, 121, 122, 123, 124, 125
a(f'''
v_and_b32 v{T}, 31, v{vLane}
v_lshrrev_b32 v{HF}, 5, v{vLane}
v_and_b32 v{L15}, 15, v{vLane}
v_bfe_u32 v{RR}, v{vLane}, 2, 2
v_and_b32 v{CC}, 3, v{vLane}
v_bfe_u32 v{NH}, v{vLane}, 4, 1
''')
a(f'''
s_lshl_b32 s60, {sG}, 6
v_lshrrev_b32 v126, 2, v{vLane}
v_lshlrev_b32 v127, 4, v{CC}
v_add_u32 v127, s60, v127
v_mul_u32_u24 v{vDq}, 3072, v126
v_add_u32 v{vDq}, v{vDq}, v127
v_lshl_add_u32 v{vDo}, v126, 10, v127
''')
a(f'''
s_lshl_b32 s61, {sTile}, 15
v_lshlrev_b32 v126, 10, v{T}
v_add_u32 v126, s61, v126
v_lshl_add_u32 v128, v{HF}, 4, v126
v_lshl_add_u32 v129, v{HF}, 3, v126
v_add_u32 v129, s60, v129
''')
a('s_waitcnt lgkmcnt(0)')
for base, lo, n in ((4, 40, 0x200000), (8, 42, 0x180000), (12, 44, 0x80000), (16, 46, 0x10000000),
                    (20, 54, 0x200000), (24, 50, 0x4000)):
    a(f's_mov_b32 s{base}, s{lo}\ns_mov_b32 s{base+1}, s{lo+1}\ns_mov_b32 s{base+2}, {n}\ns_mov_b32 s{base+3}, 0x00020000')
stamp('start')
a(f's_add_u32 s62, s46, {EPOCH}')
a('s_addc_u32 s63, s47, 0')
a(f's_load_dword {sTag}, s[62:63], 0')
for j in range(4):
    a(f'buffer_load_dwordx2 {vr(130+2*j,2)}, v129, {S_X}, 0 offen offset:{16*j}')
dma(S_WQ, vDq, L_WK, 1024, 3072)
dma(S_WQ, vDq, L_WV, 2048, 3072)
for ks in range(32):
    a(f'buffer_load_dwordx4 {vr(aX+4*ks,4,"a")}, v128, {S_X}, 0 offen offset:{32*ks}')
dma(S_WQ, vDq, L_WQ, 0, 3072)
a(f'''
v_lshlrev_b32 v126, 6, v{RR}
v_lshl_add_u32 v126, v{NH}, 5, v126
v_lshl_add_u32 v126, v{CC}, 3, v126
v_lshl_add_u32 v{vW1}, v{HF}, 9, v126
v_add_u32 v{vW2}, 256, v{vW1}
v_add_u32 v{vW1h}, 0x10000, v{vW1}
v_add_u32 v{vW2h}, 0x10000, v{vW2}
v_lshl_add_u32 v{vWo}, v{HF}, 8, v126
v_add_u32 v{vWo}, {L_WO}, v{vWo}
v_lshlrev_b32 v126, 3, v{T}
v_lshl_add_u32 v{vStatLd}, v{HF}, 11, v126
v_lshl_add_u32 v{vStatSt}, v{HF}, 2, v126
s_lshl_b32 s60, {sG}, 8
v_add_u32 v{vStatSt}, s60, v{vStatSt}
v_lshlrev_b32 v{vCsRd}, 4, v{HF}
v_add_u32 v{vCsRd}, {L_CS}, v{vCsRd}
v_lshlrev_b32 v{vCsV}, 2, v{T}
v_add_u32 v{vCsV}, {L_CS}, v{vCsV}
s_lshl_b32 s60, {sM}, 8
s_add_u32 s60, s60, {L_ST}
v_lshlrev_b32 v{vStW}, 2, v{T}
v_add_u32 v{vStW}, s60, v{vStW}
v_lshlrev_b32 v{vStR}, 4, v{HF}
v_add_u32 v{vStR}, s60, v{vStR}
''')
a(f'''
v_lshlrev_b32 v126, 2, v{HF}
v_sub_u32 v126, v{T}, v126
v_mov_b32 v127, {fbits(-1e30)}
''')
for r in range(16):
    c = (r & 3) + 8 * (r >> 2)
    a(f'v_cmp_le_i32 vcc, {c}, v126')
    a(f'v_cndmask_b32_e64 v{BLO+r}, v127, 0, vcc')
a('v_mov_b32 v138, 0x3f80')
a('v_mov_b32 v139, 0x3f800000')
for i in range(2):
    for jj in range(4):
        c = ((2 * jj) & 3) + 8 * (jj >> 1) + 16 * i
        a(f'v_cmp_eq_u32 vcc, {c}, v126')
        a('v_cndmask_b32_e64 v140, 0, v138, vcc')
        a(f'v_cmp_eq_u32 vcc, {c+1}, v126')
        a('v_cndmask_b32_e64 v140, v140, v139, vcc')
        a(f'v_accvgpr_write_b32 a{aID+4*i+jj}, v140')
a(f'''
s_waitcnt lgkmcnt(0)
s_lshr_b32 {sTag}, {sTag}, 4
s_mul_i32 {sTag}, {sTag}, 0x9E3779B1
s_add_u32 {sTag}, {sTag}, 0x1234567
s_lshl_b32 {sTag}, {sTag}, 4
''')
for j in range(4):
    for i in range(2):
        a(f'v_lshlrev_b32 v{RES+4*j+2*i}, 16, v{130+2*j+i}')
        a(f'v_and_b32 v{RES+4*j+2*i+1}, 0xffff0000, v{130+2*j+i}')
stats_partial(140)
a(f's_add_u32 s60, {sTB}, {OFF_STAT}')
a(f'buffer_store_dword v140, v{vStatSt}, {S_WS}, s60 offen sc1')
dma(S_WO, vDo, L_WO, 0, 1024)
a(f'''
s_lshl_b32 s60, {sG}, 10
v_lshlrev_b32 v127, 1, v{L15}
v_lshl_add_u32 v127, v{HF}, 7, v127
v_add_u32 v127, s60, v127
''')
a('s_waitcnt vmcnt(0)')
for h in range(2):
    for j in range(8):
        off = h * 512 + ((j & 3) + 8 * (j >> 2)) * 32
        a(f'buffer_load_ushort v{144+8*h+j}, v127, {S_PHI}, 0 offen offset:{off}')
a(f'''
s_or_b32 s60, {sTag}, {sXcc}
v_mov_b32 v140, s60
s_lshl_b32 s60, {sG}, 7
v_mov_b32 v141, s60
s_add_u32 s60, {sTB}, {OFF_XFLAG}
s_mov_b64 exec, 1
buffer_store_dword v140, v141, {S_WS}, s60 offen sc1
s_mov_b64 exec, -1
''')
a('s_waitcnt vmcnt(0)')
a(f'v_mul_u32_u24 v126, 0x8000, v{NH}')
a('v_lshl_or_b32 v126, v126, 16, v126')
for i in range(8):
    a(f'v_lshl_or_b32 v{144+2*i}, v{145+2*i}, 16, v{144+2*i}')
    a(f'v_xor_b32 v{144+2*i}, v126, v{144+2*i}')
    a(f'v_accvgpr_write_b32 a{aPHI+i}, v{144+2*i}')
a('s_mov_b32 s8, s48\ns_mov_b32 s9, s49\ns_mov_b32 s12, s52\ns_mov_b32 s13, s53')
a(f's_mov_b32 {sScale}, {fbits(0.25*1.4426950408889634)}')
a('s_barrier')
stamp('loaded')
colsum()
a.branch('s_branch L_gemm')

a.label('L_layer')
a.assume_drained()
stamp('xpub')
a(f'v_and_b32 v{W0}, 15, v{vLane}')
a(f'v_lshlrev_b32 v{W0}, 2, v{W0}')
a(f's_lshl_b32 s62, {sLayer}, 11')
a(f's_add_u32 s62, s62, {OFF_XFLAG}')
a(f's_add_u32 s62, s62, {sTB}')
poll(W0, 's62', W0 + 2)
stamp('xseen')
STT = W0
a(f's_lshl_b32 s62, {sLayer}, 12')
a(f's_add_u32 s62, s62, {OFF_STAT}')
a(f's_add_u32 s62, s62, {sTB}')
for i in range(8):
    a(f'buffer_load_dwordx2 {vr(STT+2*i,2)}, v{vStatLd}, {S_WS}, s62 offen offset:{256*i} sc1')
a(f's_lshl_b32 s62, {sLayer}, 15')
a(f's_add_u32 s62, s62, {sTB}')
a(f's_sub_u32 s62, s62, {0x8000 - OFF_X}')
for ks in range(32):
    a(f'buffer_load_dwordx4 {vr(aX+4*ks,4,"a")}, v{vL16}, {S_WS}, s62 offen offset:{(ks%4)*1024} sc1')
    if ks % 4 == 3 and ks < 31:
        a('s_add_u32 s62, s62, 4096')
dma(S_WO, vDo, L_WO, 0, 1024)
a(f's_bitcmp1_b32 {sLayer}, 0')
a('s_cselect_b32 s12, s44, s52\ns_cselect_b32 s13, s45, s53')

a.label('L_gemm')
NB = 3


def kvreads(ks):
    b = WF + 8 * (ks % NB)
    trread(b, vW1, vW2, L_WK + ks * 1024)
    trread(b + 4, vW1h, vW2h, ks * 1024)


for ks in range(NB - 1):
    kvreads(ks)
for ks in range(32):
    if ks + NB - 1 < 32:
        kvreads(ks + NB - 1)
    b = WF + 8 * (ks % NB)
    x = vr(aX + 4 * ks, 4, 'a')
    mfma(vr(ACCK, 16), vr(b, 4), x, vr(ACCK, 16) if ks else '0')
    mfma(vr(ACCV, 16), x, vr(b + 4, 4), vr(ACCV, 16) if ks else '0')
stamp('kvpass')
l1 = L('not0')
a(f's_cmp_lg_u32 {sLayer}, 0')
a.branch(f's_cbranch_scc1 {l1}', flush=False)
st = a.state()
a(f'v_and_b32 v{W0+20}, 15, v{vLane}')
a(f'v_lshlrev_b32 v{W0+20}, 7, v{W0+20}')
a(f's_add_u32 s62, {sTB}, {OFF_XFLAG}')
poll(W0 + 20, 's62', W0 + 22, masked=True)
a(f'v_and_b32 v{W0+22}, 15, v{W0+22}')
a(f'v_cmp_ne_u32 vcc, {sXcc}, v{W0+22}')
a('s_nop 1')
a('s_cmp_eq_u64 vcc, 0')
a(f's_cselect_b32 {sMode}, 1, 0')
a(f's_add_u32 s62, {sTB}, {OFF_STAT}')
for i in range(8):
    a(f'buffer_load_dwordx2 {vr(STT+2*i,2)}, v{vStatLd}, {S_WS}, s62 offen offset:{256*i} sc1')
a('s_waitcnt vmcnt(0)')
a.label(l1, flush=False)
a.set_state(st)
l2 = L('nocsbar')
a(f's_cmp_ge_u32 {sLayer}, 2')
a.branch(f's_cbranch_scc1 {l2}', flush=False)
a('s_barrier')
a.label(l2, flush=False)
CSK, RST, NMT = W0 + 16, W0 + 32, W0 + 48
CSV = W0 + 64
KP, VP = W0 + 68, W0 + 76
RS = W0 + 66
for j in range(4):
    a(f'ds_read_b128 {vr(CSK+4*j,4)}, v{vCsRd} offset:{128+32*j}')
a(f'ds_read_b32 v{CSV}, v{vCsV} offset:256')
for i in range(1, 8):
    a(f'v_pk_add_f32 {vr(STT,2)}, {vr(STT,2)}, {vr(STT+2*i,2)}')
allreduce_pair(STT, STT + 1, 'v_add_f32', None)
a(f'''
v_mul_f32 v{STT}, {fbits(1/512)}, v{STT}
v_mul_f32 v{STT+1}, {fbits(1/512)}, v{STT+1}
v_fma_f32 v{STT+1}, -v{STT}, v{STT}, v{STT+1}
v_max_f32 v{STT+1}, 0, v{STT+1}
v_add_f32 v{STT+1}, {fbits(1e-5)}, v{STT+1}
v_rsq_f32 v{RS}, v{STT+1}
v_mul_f32_e64 v{RS+1}, -v{STT}, v{RS}
ds_write_b32 v{vStW}, v{RS}
ds_write_b32 v{vStW}, v{RS+1} offset:128
''')
for j in range(4):
    a(f'ds_read_b128 {vr(RST+4*j,4)}, v{vStR} offset:{32*j}')
for j in range(4):
    a(f'ds_read_b128 {vr(NMT+4*j,4)}, v{vStR} offset:{128+32*j}')
for i in range(8):
    a(f'v_pk_mul_f32 {vr(CSK+2*i,2)}, {vr(CSK+2*i,2)}, {vr(RS,2)} op_sel:[0,1] op_sel_hi:[1,1]')
    a(f'v_pk_fma_f32 {vr(CSK+2*i,2)}, {vr(ACCK+2*i,2)}, {vr(RS,2)}, {vr(CSK+2*i,2)} op_sel:[0,0,0] op_sel_hi:[1,0,1]')
for i in range(8):
    a(f'v_cvt_pk_bf16_f32 v{KP+i}, v{CSK+2*i}, v{CSK+2*i+1}')
for i in range(8):
    a(f'v_pk_mul_f32 {vr(NMT+2*i,2)}, {vr(NMT+2*i,2)}, {vr(CSV,2)} op_sel:[0,0] op_sel_hi:[1,0]')
    a(f'v_pk_fma_f32 {vr(NMT+2*i,2)}, {vr(ACCV+2*i,2)}, {vr(RST+2*i,2)}, {vr(NMT+2*i,2)}')
for i in range(8):
    a(f'v_cvt_pk_bf16_f32 v{VP+i}, v{NMT+2*i}, v{NMT+2*i+1}')
a(f's_lshr_b32 {sHalf}, {sLayer}, 1')
stamp('kvepi')


def qpass(QP):
    NBQ = 6
    CSQ = W0 + 16
    for j in range(4):
        a(f'ds_read_b128 {vr(CSQ+4*j,4)}, v{vCsRd} offset:{32*j}')
    for ks in range(NBQ - 1):
        trread(WF + 4 * ks, vW1, vW2, L_WQ + ks * 1024)
    a(f'v_mul_f32 v{RS}, {sScale}, v{RS}')
    a(f'v_mul_f32 v{RS+1}, {sScale}, v{RS+1}')
    for ks in range(32):
        k2 = ks + NBQ - 1
        if k2 < 32:
            trread(WF + 4 * (k2 % NBQ), vW1, vW2, L_WQ + k2 * 1024)
        mfma(vr(ACCQ, 16), vr(WF + 4 * (ks % NBQ), 4), vr(aX + 4 * ks, 4, 'a'), vr(ACCQ, 16) if ks else '0')
        if 2 <= ks < 10:
            i = ks - 2
            a(f'v_pk_mul_f32 {vr(CSQ+2*i,2)}, {vr(CSQ+2*i,2)}, {vr(RS,2)} op_sel:[0,1] op_sel_hi:[1,1]')
    return CSQ


def qepi(QP, CSQ):
    for i in range(8):
        a(f'v_pk_fma_f32 {vr(CSQ+2*i,2)}, {vr(ACCQ+2*i,2)}, {vr(RS,2)}, {vr(CSQ+2*i,2)} op_sel:[0,0,0] op_sel_hi:[1,0,1]')
    for i in range(8):
        a(f'v_cvt_pk_bf16_f32 v{QP+i}, v{CSQ+2*i}, v{CSQ+2*i+1}')
    a(f'v_add_u32 v{vW1}, {-L_WO & 0xffffffff}, v{vWo}')
    a(f'v_add_u32 v{vW2}, 512, v{vW1}')
    a(f'v_add_u32 v{vW1h}, 0x10000, v{vW1}')
    a(f'v_add_u32 v{vW2h}, 0x10000, v{vW2}')


a(f's_bitcmp1_b32 {sLayer}, 0')
a.branch('s_cbranch_scc1 L_layerB')
stA = a.state()
OP1, OP2 = W0 + 84, W0 + 88
a(f'''
s_lshl_b32 s62, {sTile}, 17
s_lshl_b32 s63, {sHalf}, 16
s_add_u32 s62, s62, s63
s_lshl_b32 s63, {sG}, 12
s_add_u32 s62, s62, s63
s_add_u32 s62, s62, {KVH}
s_lshl_b32 s63, {sM}, 12
s_add_u32 s63, s63, {L_OWN}
v_add_u32 v{W0}, s63, v{vL16}
''')
for i in range(4):
    a(f'buffer_store_dwordx4 {vr(KP+4*i,4)}, v{vL16}, {S_WS}, s62 offen offset:{1024*i} sc1')
for i in range(4):
    a(f'ds_write_b128 v{W0}, {vr(KP+4*i,4)} offset:{1024*i}')
QP = W0 + 4
CSQ = qpass(QP)
a(f'''
s_lshl_b32 s62, {sTile}, 1
s_add_u32 s62, s62, {sHalf}
s_lshl_b32 s62, s62, 4
s_add_u32 s62, s62, {sG}
s_lshl_b32 s62, s62, 7
s_add_u32 s62, s62, {KVHF}
v_mov_b32 v{W0}, {sTag}
v_mov_b32 v{W0+1}, 0
s_waitcnt vmcnt(0)
s_mov_b64 exec, 1
buffer_store_dword v{W0}, v{W0+1}, {S_WS}, s62 offen sc1
s_mov_b64 exec, -1
''')
qepi(QP, CSQ)
a(f'''
s_lshl_b32 s63, {sM}, 11
s_add_u32 s63, s63, {L_QX}
v_add_u32 v{W0+2}, s63, v{vL16}
ds_write_b128 v{W0+2}, {vr(QP,4)}
ds_write_b128 v{W0+2}, {vr(QP+4,4)} offset:1024
s_waitcnt lgkmcnt(0)
s_barrier
''')
stamp('qdone')
nohalo = L('nohalo')
a(f'''
s_lshl_b32 s63, {sRb}, 2
s_lshl_b32 s60, {sM}, 1
s_add_u32 s63, s63, s60
s_cmp_lt_u32 s63, 8
''')
a.branch(f's_cbranch_scc1 {nohalo}')
a(f'''
s_sub_u32 s63, s63, 8
s_lshl_b32 s62, s63, 1
s_add_u32 s62, s62, {sHalf}
s_lshl_b32 s62, s62, 4
s_add_u32 s62, s62, {sG}
s_lshl_b32 s62, s62, 7
s_add_u32 s62, s62, {KVHF}
v_and_b32 v{W0}, 1, v{vLane}
v_lshlrev_b32 v{W0}, 12, v{W0}
''')
poll(W0, 's62', W0 + 2)
a(f'''
s_lshl_b32 s62, s63, 17
s_lshl_b32 s60, {sHalf}, 16
s_add_u32 s62, s62, s60
s_lshl_b32 s60, {sG}, 12
s_add_u32 s62, s62, s60
s_add_u32 s62, s62, {KVH}
s_add_u32 s63, s62, 0x20000
s_lshl_b32 s60, {sM}, 13
s_add_u32 s60, s60, {L_KV}
v_add_u32 v{W0}, s60, v{vL16}
''')
HB = W0 + 16
for i in range(8):
    a(f'buffer_load_dwordx4 {vr(HB+4*i,4)}, v{vL16}, {S_WS}, {"s62" if i<4 else "s63"} offen offset:{1024*(i%4)} sc1')
for i in range(8):
    a(f'ds_write_b128 v{W0}, {vr(HB+4*i,4)} offset:{1024*i}')
a('s_waitcnt lgkmcnt(0)')
a.label(nohalo)
a.assume_drained()
a('s_barrier')
stamp('halo')
dma(S_WQ, vDq, L_WQ, 0, 3072)
dma(S_WQ, vDq, L_WK, 1024, 3072)
a(f's_mov_b32 {sD3L}, {L_WV}\ns_mov_b32 {sD3T}, 2048')


def attention_generic(s_tl, OPK):
    Q, K, V, S, P, O, C0, C1 = W0, W0 + 4, W0 + 8, W0 + 16, W0 + 32, W0 + 40, ACCK, ACCV
    vK, vV, vM, vT = W0 + 56, W0 + 57, W0 + 58, W0 + 59
    a(f'''
    s_lshr_b32 s75, {sM}, 1
    s_lshl_b32 s60, {s_tl}, 1
    s_add_u32 s60, s60, s75
    s_lshl_b32 s60, s60, 10
    s_add_u32 s60, s60, {L_QX}
    v_add_u32 v{vT}, s60, v{vL16}
    ds_read_b128 {vr(Q,4)}, v{vT}
    s_lshl_b32 s60, {sRb}, 2
    s_add_u32 s60, s60, {s_tl}
    s_min_u32 s76, s60, 7
    s_cmp_ge_u32 s60, 8
    s_cselect_b32 s77, 1, 0
    s_lshl_b32 s60, {s_tl}, 12
    s_add_u32 s60, s60, {L_OWN}
    s_lshl_b32 s61, s75, 10
    s_add_u32 s61, s61, s60
    s_mov_b32 s79, s61
    v_add_u32 v{vK}, s61, v{vL16}
    s_lshl_b32 s61, s75, 8
    s_add_u32 s61, s61, s60
    s_add_u32 s61, s61, 2048
    v_add_u32 v{vV}, s61, v{vL16}
    ''')
    for i in range(8):
        a(f'v_mov_b32 v{V+i}, 0x3f803f80')

    def p1(C, first=False):
        a(f'ds_read_b128 {vr(K,4)}, v{vK}')
        mfma(vr(S, 16), vr(K, 4), vr(Q, 4), C)
        if first:
            a(f'v_max_f32 v{vM}, v{S}, v{S+1}')
        else:
            a(f'v_max3_f32 v{vM}, v{vM}, v{S}, v{S+1}')
        for i in range(1, 8):
            a(f'v_max3_f32 v{vM}, v{vM}, v{S+2*i}, v{S+2*i+1}')

    def p2(C, first=False):
        a(f'ds_read_b128 {vr(K,4)}, v{vK}')
        a(f's_mov_b64 exec, {sVM}')
        a(f'ds_read_b128 {vr(V,4)}, v{vV}')
        a(f'ds_read_b128 {vr(V+4,4)}, v{vV} offset:1024')
        a('s_mov_b64 exec, -1')
        mfma(vr(S, 16), vr(K, 4), vr(Q, 4), C)
        for i in range(16):
            a(f'v_exp_f32 v{S+i}, v{S+i}')
        for i in range(8):
            a(f'v_cvt_pk_bf16_f32 v{P+i}, v{S+2*i}, v{S+2*i+1}')
        mfma(vr(O, 16), vr(V, 4), vr(P, 4), '0' if first else vr(O, 16))
        mfma(vr(O, 16), vr(V + 4, 4), vr(P + 4, 4), vr(O, 16))

    def sweep(body, Cfull, mk_far):
        lp, done, nofar = L('lp'), L('done'), L('nofar')
        a('s_mov_b32 s78, s76')
        a.label(lp)
        a('s_cmp_eq_u32 s78, 0')
        a.branch(f's_cbranch_scc1 {done}')
        a(f'v_add_u32 v{vK}, {-4096 & 0xffffffff}, v{vK}')
        a(f'v_add_u32 v{vV}, {-4096 & 0xffffffff}, v{vV}')
        body(Cfull)
        a('s_sub_u32 s78, s78, 1')
        a.branch(f's_branch {lp}')
        a.label(done)
        a('s_cmp_eq_u32 s77, 0')
        a.branch(f's_cbranch_scc1 {nofar}')
        a(f'v_add_u32 v{vK}, {-4096 & 0xffffffff}, v{vK}')
        a(f'v_add_u32 v{vV}, {-4096 & 0xffffffff}, v{vV}')
        mk_far()
        body(vr(C1, 16))
        a.label(nofar)

    a(f'v_mov_b32 v{vT+1}, v{vV}')
    p1(vr(BLO, 16), first=True)

    def far1():
        for r in range(16):
            a(f'v_sub_f32 v{C1+r}, {fbits(-1e30)}, v{BLO+r}')
    sweep(p1, '0', far1)
    a(f'''
    v_mov_b32 v{vT}, v{vM}
    v_permlane32_swap_b32 v{vM}, v{vT}
    v_max_f32 v{vM}, v{vM}, v{vT}
    v_add_u32 v{vK}, s79, v{vL16}
    v_mov_b32 v{vV}, v{vT+1}
    ''')
    for r in range(16):
        a(f'v_sub_f32 v{C0+r}, 0, v{vM}')
        a(f'v_sub_f32 v{C1+r}, v{BLO+r}, v{vM}')
    p2(vr(C1, 16), first=True)

    def far2():
        for r in range(16):
            a(f'v_sub_f32 v{C1+r}, {fbits(-1e30)}, v{BLO+r}')
            a(f'v_sub_f32 v{C1+r}, v{C1+r}, v{vM}')
    sweep(p2, vr(C0, 16), far2)
    a(f'v_rcp_f32 v{vT}, v{O+8}')
    for i in range(8):
        a(f'v_mul_f32 v{O+i}, v{O+i}, v{vT}')
    for i in range(4):
        a(f'v_cvt_pk_bf16_f32 v{OPK+i}, v{O+2*i}, v{O+2*i+1}')


a(f's_and_b32 s71, {sM}, 1')
attention_generic('s71', OP1)
a(f's_sub_u32 s71, 3, s71')
attention_generic('s71', OP2)
a(f'''
s_lshr_b32 s60, {sM}, 1
s_lshl_b32 s61, {sG}, 1
s_add_u32 s60, s60, s61
s_and_b32 s61, {sM}, 1
s_lshl_b32 s62, {sRb}, 2
s_add_u32 s63, s62, s61
s_lshl_b32 s63, s63, 18
s_add_u32 s62, s62, 3
s_sub_u32 s62, s62, s61
s_lshl_b32 s62, s62, 18
s_lshl_b32 s61, s60, 10
s_add_u32 {sO1}, s63, s61
s_add_u32 {sO2}, s62, s61
s_lshl_b32 s61, s60, 2
s_add_u32 {sF1}, s63, s61
s_add_u32 {sF2}, s62, s61
''')
a.branch('s_branch L_opub')

a.label('L_layerB')
a.set_state(stA)
PH, TT = W0, W0 + 16
PK, TP, D3 = W0 + 32, W0 + 40, W0 + 48
ZP0 = W0 + 92
tmp = W0 + 96
a(f's_lshl_b32 s63, {sM}, 12')
a(f's_add_u32 s63, s63, {L_OWN}')
a(f'v_add_u32 v{W0+100}, s63, v{vL16}')
for h in range(2):
    phi(KP + 4 * h, h, PK, PH, tmp)
    mfma(vr(TT, 16), vr(PK, 4), vr(aID, 4, 'a'), '0')
    mfma(vr(TT, 16), vr(PK + 4, 4), vr(aID + 4, 4, 'a'), vr(TT, 16))
    for i in range(8):
        a(f'v_cvt_pk_bf16_f32 v{TP+i}, v{TT+2*i}, v{TT+2*i+1}')
    mfma(vr(D3, 16), vr(TP, 4), vr(VP, 4), '0')
    mfma(vr(D3, 16), vr(TP + 4, 4), vr(VP + 4, 4), vr(D3, 16))
    for i in range(1, 8):
        a(f'v_pk_add_f32 {vr(TT,2)}, {vr(TT,2)}, {vr(TT+2*i,2)}')
    a(f'v_add_f32 v{ZP0+h}, v{TT}, v{TT+1}')
    if h == 0:
        a(f's_mov_b64 exec, {sVM}')
    else:
        a(f's_not_b64 exec, {sVM}')
    for w in range(4):
        a(f'ds_write_b128 v{W0+100}, {vr(D3+4*w,4)} offset:{1024*w}')
    a('s_mov_b64 exec, -1')
a(f'''
v_permlane32_swap_b32 v{ZP0}, v{ZP0+1}
v_add_f32 v{ZP0}, v{ZP0}, v{ZP0+1}
s_lshl_b32 s63, {sM}, 8
s_add_u32 s63, s63, {L_ZPART}
v_lshlrev_b32 v{tmp}, 2, v{vLane}
v_add_u32 v{tmp}, s63, v{tmp}
ds_write_b32 v{tmp}, v{ZP0}
s_lshl_b32 s63, {sM}, 10
s_add_u32 s63, s63, {L_OWN}
v_add_u32 v{tmp}, s63, v{vL16}
s_lshl_b32 s63, {sM}, 6
s_add_u32 s63, s63, {L_ZPART}
v_and_b32 v{tmp+1}, 15, v{vLane}
v_lshlrev_b32 v{tmp+1}, 2, v{tmp+1}
v_add_u32 v{tmp+2}, s63, v{tmp+1}
s_waitcnt lgkmcnt(0)
s_barrier
''')
for mm in range(4):
    a(f'ds_read_b128 {vr(PH+4*mm,4)}, v{tmp} offset:{4096*mm}')
for mm in range(4):
    a(f'ds_read_b32 v{TT+mm}, v{tmp+2} offset:{256*mm}')
a(f'''
s_lshl_b32 s71, {sHalf}, 4
s_add_u32 s71, s71, {sG}
s_lshl_b32 s71, s71, 2
s_add_u32 s71, s71, {sM}
s_lshl_b32 s71, s71, 4
s_add_u32 s60, s71, {sRb}
s_lshl_b32 s62, s60, 9
s_add_u32 s62, s62, {KVP}
s_lshl_b32 s63, s60, 7
s_add_u32 s75, s63, {KVPF}
s_add_u32 s63, s63, {ZP}
v_lshlrev_b32 v{tmp+3}, 3, v{vLane}
''')
for mm in range(1, 4):
    a(f'v_pk_add_f32 {vr(PH,2)}, {vr(PH,2)}, {vr(PH+4*mm,2)}')
    a(f'v_pk_add_f32 {vr(PH+2,2)}, {vr(PH+2,2)}, {vr(PH+4*mm+2,2)}')
a(f'''
v_cvt_pk_bf16_f32 v{PH}, v{PH}, v{PH+1}
v_cvt_pk_bf16_f32 v{PH+1}, v{PH+2}, v{PH+3}
buffer_store_dwordx2 {vr(PH,2)}, v{tmp+3}, {S_WS}, s62 offen sc1
v_add_f32 v{TT}, v{TT}, v{TT+1}
v_add_f32 v{TT+2}, v{TT+2}, v{TT+3}
v_add_f32 v{TT}, v{TT}, v{TT+2}
s_mov_b64 exec, 0xffff
buffer_store_dword v{TT}, v{tmp+1}, {S_WS}, s63 offen sc1
s_mov_b64 exec, -1
''')
stamp('kvpub')
QPB = W0 + 104
CSQ = qpass(QPB)
a(f'''
v_mov_b32 v{W0}, {sTag}
v_mov_b32 v{W0+1}, 0
s_waitcnt vmcnt(0)
s_mov_b64 exec, 1
buffer_store_dword v{W0}, v{W0+1}, {S_WS}, s75 offen sc1
s_mov_b64 exec, -1
''')
nodma = L('nodma')
a(f's_cmp_eq_u32 {sLayer}, 3')
a.branch(f's_cbranch_scc1 {nodma}', flush=False)
dma(S_WQ, vDq, L_WK, 1024, 3072)
dma(S_WQ, vDq, L_WV, 2048, 3072)
a.label(nodma, flush=False)
a(f's_mov_b32 {sD3L}, {L_WQ}\ns_mov_b32 {sD3T}, 0')
qepi(QPB, CSQ)
PQ = W0 + 112
for h in range(2):
    phi(QPB + 4 * h, h, PQ + 8 * h, PH, tmp)
stamp('phiq')
a(f'''
s_lshl_b32 s62, s71, 7
s_add_u32 s63, s62, {ZP}
s_add_u32 s62, s62, {KVPF}
v_and_b32 v{W0}, 15, v{vLane}
v_lshlrev_b32 v{W0+1}, 2, v{W0}
v_lshlrev_b32 v{W0}, 7, v{W0}
v_lshrrev_b32 v{W0+4}, 4, v{vLane}
v_lshl_add_u32 v{W0+1}, v{W0+4}, 7, v{W0+1}
v_lshlrev_b32 v{W0+4}, 3, v{vLane}
''')
poll(W0, 's62', W0 + 2)
G = W0 + 16
ZG = W0 + 48
a(f's_lshl_b32 s62, s71, 9')
a(f's_add_u32 s62, s62, {KVP}')
for r in range(16):
    a(f'buffer_load_dwordx2 {vr(G+2*r,2)}, v{W0+4}, {S_WS}, s62 offen offset:{(r%8)*512} sc1')
    if r == 7:
        a('s_add_u32 s62, s62, 4096')
for q in range(4):
    a(f'buffer_load_dword v{ZG+q}, v{W0+1}, {S_WS}, s63 offen offset:{512*q} sc1')
AC = W0 + 8
for r in range(16):
    for i in range(2):
        d = AC + 2 * i if r == 0 else AC + 4 + 2 * i
        a(f'v_lshlrev_b32 v{d}, 16, v{G+2*r+i}')
        a(f'v_and_b32 v{d+1}, 0xffff0000, v{G+2*r+i}')
        if r:
            a(f'v_pk_add_f32 {vr(AC+2*i,2)}, {vr(AC+2*i,2)}, {vr(d,2)}')
a(f'''
v_cvt_pk_bf16_f32 v{AC}, v{AC}, v{AC+1}
v_cvt_pk_bf16_f32 v{AC+1}, v{AC+2}, v{AC+3}
s_lshr_b32 s60, {sM}, 1
s_lshl_b32 s60, s60, 10
s_and_b32 s61, {sM}, 1
s_lshl_b32 s62, s61, 3
s_add_u32 s60, s60, s62
s_add_u32 s60, s60, {L_KVTOT}
v_add_u32 v{W0}, s60, v{vL16}
ds_write_b64 v{W0}, {vr(AC,2)}
v_add_f32 v{ZG}, v{ZG}, v{ZG+1}
v_add_f32 v{ZG+2}, v{ZG+2}, v{ZG+3}
v_add_f32 v{ZG}, v{ZG}, v{ZG+2}
v_mov_b32 v{ZG+1}, v{ZG}
v_permlane32_swap_b32 v{ZG}, v{ZG+1}
v_add_f32 v{ZG}, v{ZG}, v{ZG+1}
v_mov_b32 v{ZG+1}, v{ZG}
v_permlane16_swap_b32 v{ZG}, v{ZG+1}
v_add_f32 v{ZG}, v{ZG}, v{ZG+1}
v_cvt_pk_bf16_f32 v{ZG}, v{ZG}, v{ZG}
s_lshl_b32 s61, s61, 10
s_lshr_b32 s60, {sM}, 1
s_lshl_b32 s60, s60, 8
s_add_u32 s60, s60, s61
s_add_u32 s60, s60, {L_ZTOT}
v_bfe_u32 v{W0+1}, v{vLane}, 2, 1
v_lshlrev_b32 v{W0+1}, 4, v{W0+1}
v_and_b32 v{W0+2}, 3, v{vLane}
v_lshl_add_u32 v{W0+1}, v{W0+2}, 1, v{W0+1}
v_and_b32 v{W0+2}, 8, v{vLane}
v_add3_u32 v{W0+1}, v{W0+1}, v{W0+2}, s60
ds_write_b16 v{W0+1}, v{ZG}
v_lshrrev_b32 v{W0+2}, 5, v{vLane}
v_lshlrev_b32 v{W0+2}, 4, v{W0+2}
v_add_u32 v{W0+2}, {L_ZTOT}, v{W0+2}
v_add_u32 v{W0+3}, {L_KVTOT}, v{vL16}
v_cndmask_b32_e64 v{W0+2}, v{W0+2}, v{W0+3}, {sVM}
s_waitcnt lgkmcnt(0)
s_barrier
''')
stamp('kvtot')
AF = W0 + 16
for h in range(2):
    for i in range(2):
        a(f'ds_read_b128 {vr(AF+8*h+4*i,4)}, v{W0+2} offset:{1024*i+256*h}')
DO = W0 + 32
for h in range(2):
    mfma(vr(DO + 16 * h, 16), vr(AF + 8 * h, 4), vr(PQ + 8 * h, 4), '0')
    mfma(vr(DO + 16 * h, 16), vr(AF + 8 * h + 4, 4), vr(PQ + 8 * h + 4, 4), vr(DO + 16 * h, 16))
for h in range(2):
    d = DO + 16 * h
    a(f'v_add_f32 v{d+8}, {fbits(1e-6)}, v{d+8}')
    a(f'v_rcp_f32 v{d+8}, v{d+8}')
    for i in range(4):
        a(f'v_pk_mul_f32 {vr(d+2*i,2)}, {vr(d+2*i,2)}, {vr(d+8,2)} op_sel:[0,0] op_sel_hi:[1,0]')
    for i in range(4):
        a(f'v_cvt_pk_bf16_f32 v{(OP1,OP2)[h]+i}, v{d+2*i}, v{d+2*i+1}')
a(f'''
s_lshl_b32 s61, {sG}, 11
s_add_u32 {sO1}, {sTB}, s61
s_add_u32 {sO2}, {sO1}, 1024
s_lshl_b32 s61, {sG}, 3
s_add_u32 {sF1}, {sTB}, s61
s_add_u32 {sF2}, {sF1}, 4
''')

a.label('L_opub')
a.vm = [set()]
stamp('attn')
a(f'''
s_lshl_b32 s60, {sLayer}, 15
s_add_u32 s60, s60, {OFF_O}
s_add_u32 {sO1}, {sO1}, s60
s_add_u32 {sO2}, {sO2}, s60
s_lshl_b32 s61, {sLayer}, 8
s_add_u32 s61, s61, {OFF_OFLAG}
s_add_u32 {sF1}, {sF1}, s61
s_add_u32 {sF2}, {sF2}, s61
v_mov_b32 v{W0}, {sTag}
v_mov_b32 v{W0+1}, 0
s_cmp_eq_u32 {sMode}, 0
''')
slow, j1 = L('oslow'), L('ojoin')
a.branch(f's_cbranch_scc1 {slow}')
for fl, lab in (('', None), ('sc1', slow)):
    if lab:
        a.label(lab)
    a(f'''
    buffer_store_dwordx4 {vr(OP1,4)}, v{vL16}, {S_WS}, {sO1} offen {fl}
    buffer_store_dwordx4 {vr(OP2,4)}, v{vL16}, {S_WS}, {sO2} offen {fl}
    s_waitcnt vmcnt(0)
    s_mov_b64 exec, 1
    buffer_store_dword v{W0}, v{W0+1}, {S_WS}, {sF1} offen {fl}
    buffer_store_dword v{W0}, v{W0+1}, {S_WS}, {sF2} offen {fl}
    s_mov_b64 exec, -1
    ''')
    if not lab:
        a.branch(f's_branch {j1}')
a.label(j1)
a('s_waitcnt lgkmcnt(0)')
a('s_barrier')
a(f'''
v_and_b32 v{W0+4}, 31, v{vLane}
v_lshlrev_b32 v{W0+4}, 2, v{W0+4}
s_add_u32 s62, {sTB}, s61
s_add_u32 s63, {sTB}, s60
''')
NBO = 6
for ks in range(NBO - 1):
    trread(WF + 4 * ks, vWo, vWo, ks * 1024, ks * 1024 + 512)
poll(W0 + 4, 's62', W0 + 2)
stamp('oseen')
for ks in range(32):
    a(f'buffer_load_dwordx4 {vr(aX+4*ks,4,"a")}, v{vL16}, {S_WS}, s63 offen offset:{(ks%4)*1024} sc1')
    if ks % 4 == 3 and ks < 31:
        a('s_add_u32 s63, s63, 4096')
dma(S_WQ, vDq, None, None, 3072, s_lds=sD3L, s_col=sD3T)
a(f's_bitcmp1_b32 {sLayer}, 0')
a('s_cselect_b32 s8, s48, s42\ns_cselect_b32 s9, s49, s43')
for ks in range(32):
    k2 = ks + NBO - 1
    if k2 < 32:
        trread(WF + 4 * (k2 % NBO), vWo, vWo, k2 * 1024, k2 * 1024 + 512)
    mfma(vr(RES, 16), vr(WF + 4 * (ks % NBO), 4), vr(aX + 4 * ks, 4, 'a'), vr(RES, 16))
XP = W0 + 8
for i in range(8):
    a(f'v_cvt_pk_bf16_f32 v{XP+i}, v{RES+2*i}, v{RES+2*i+1}')
stamp('oproj')
a(f's_cmp_eq_u32 {sLayer}, 3')
a.branch('s_cbranch_scc1 L_final')
stats_partial(W0 + 4)
a(f'''
s_add_u32 {sLayer}, {sLayer}, 1
s_lshl_b32 s60, {sLayer}, 15
s_add_u32 s60, s60, {sTB}
s_sub_u32 s60, s60, {0x8000 - OFF_X}
s_lshl_b32 s61, {sG}, 11
s_add_u32 s60, s60, s61
s_lshl_b32 s61, {sLayer}, 12
s_add_u32 s61, s61, {OFF_STAT}
s_add_u32 s61, s61, {sTB}
s_lshl_b32 s62, {sLayer}, 11
s_add_u32 s62, s62, {OFF_XFLAG}
s_add_u32 s62, s62, {sTB}
s_lshl_b32 s63, {sG}, 2
s_add_u32 s62, s62, s63
v_mov_b32 v{W0}, {sTag}
v_mov_b32 v{W0+1}, 0
s_cmp_eq_u32 {sMode}, 0
''')
slow, j1 = L('xslow'), L('xjoin')
a.branch(f's_cbranch_scc1 {slow}')
for fl, lab in (('', None), ('sc1', slow)):
    if lab:
        a.label(lab)
    a(f'''
    buffer_store_dwordx4 {vr(XP,4)}, v{vL16}, {S_WS}, s60 offen {fl}
    buffer_store_dwordx4 {vr(XP+4,4)}, v{vL16}, {S_WS}, s60 offen offset:1024 {fl}
    buffer_store_dword v{W0+4}, v{vStatSt}, {S_WS}, s61 offen {fl}
    s_waitcnt vmcnt(0)
    s_mov_b64 exec, 1
    buffer_store_dword v{W0}, v{W0+1}, {S_WS}, s62 offen {fl}
    s_mov_b64 exec, -1
    ''')
    if not lab:
        a.branch(f's_branch {j1}')
a.label(j1)
a(f'''
v_xor_b32 v{vCsRd}, 0x200, v{vCsRd}
v_xor_b32 v{vCsV}, 0x200, v{vCsV}
s_bitcmp1_b32 {sLayer}, 0
s_cselect_b32 {sScale}, 1.0, {fbits(0.25*1.4426950408889634)}
s_waitcnt lgkmcnt(0)
s_barrier
s_cmp_lg_u32 {sLayer}, 1
''')
a.branch('s_cbranch_scc1 L_layer')
colsum()
a.branch('s_branch L_layer')

a.label('L_final')
a(f'''
v_and_b32 v{W0}, 31, v{vLane}
v_lshlrev_b32 v{W0}, 10, v{W0}
v_lshrrev_b32 v{W0+1}, 5, v{vLane}
v_lshl_add_u32 v{W0}, v{W0+1}, 4, v{W0}
s_lshl_b32 s60, {sTile}, 15
s_lshl_b32 s61, {sG}, 6
s_add_u32 s60, s60, s61
v_permlane32_swap_b32 v{XP}, v{XP+2}
v_permlane32_swap_b32 v{XP+1}, v{XP+3}
v_permlane32_swap_b32 v{XP+4}, v{XP+6}
v_permlane32_swap_b32 v{XP+5}, v{XP+7}
buffer_store_dwordx4 {vr(XP,4)}, v{W0}, {S_OUT}, s60 offen
buffer_store_dwordx4 {vr(XP+4,4)}, v{W0}, {S_OUT}, s60 offen offset:32
s_or_b32 s60, s2, {sM}
s_cmp_lg_u32 s60, 0
''')
a.branch('s_cbranch_scc1 L_fin2')
a(f'''
v_mov_b32 v{W0+2}, {sTag}
v_mov_b32 v{W0+3}, {EPOCH}
s_mov_b64 exec, 1
buffer_store_dword v{W0+2}, v{W0+3}, {S_WS}, 0 offen
s_mov_b64 exec, -1
''')
a.label('L_fin2')
stamp('end')
a('s_waitcnt vmcnt(0)')
a.label('L_end')
a('s_endpgm')
a.raw(f'''.section .rodata,"a"
.p2align 6
.amdhsa_kernel {NAME}_kernel
  .amdhsa_next_free_vgpr 512
  .amdhsa_next_free_sgpr 96
  .amdhsa_accum_offset 256
  .amdhsa_group_segment_fixed_size 0
  .amdhsa_kernarg_size 80
  .amdhsa_user_sgpr_count 2
  .amdhsa_user_sgpr_kernarg_segment_ptr 1
  .amdhsa_system_sgpr_workgroup_id_x 1
.end_amdhsa_kernel''')
open(OUT, 'w').write(a.text())
print('instructions', a.ninstr, 'nop states', a.nops, 'stamps', stamp_names, file=sys.stderr)
```
